```python
import torch

def _softmax(x, axis=-1):
    return torch.softmax(x, dim=axis)
def _gelu(x):
    return torch.nn.functional.gelu(x, approximate="tanh")
def _silu(x):
    return torch.nn.functional.silu(x)
def _sigmoid(x):
    return torch.sigmoid(x)
def _layernorm(x, axis=-1, eps=1e-5):
    m = x.mean(dim=axis, keepdim=True)
    v = x.var(dim=axis, keepdim=True, unbiased=False)
    return (x - m) / torch.sqrt(v + eps)
def _scatter_add(tgt, idx, src, axis=0):
    return tgt.clone().index_add_(axis, idx, src)
def _segment_sum(src, seg, n):
    out = torch.zeros((n,) + src.shape[1:], dtype=src.dtype)
    return out.index_add_(0, seg, src)
def _pad(x, pw):
    flat = tuple(v for pair in reversed(pw) for v in pair)
    return torch.nn.functional.pad(x, flat)

kernel_name = 'sequential_preLN__linear_attn_block__mixer_token_mlp__prompt'

def setup_inputs():

    _w = (lambda a: (lambda t: t.to(torch.bfloat16) if t.is_floating_point() else t)(torch.as_tensor(a)))
    def _A_setup():
        B, S, D = 1, 2048, 640
        return {
            "x": _w((lambda *s: torch.randn(*s, dtype=torch.bfloat16) * 0.05)(B, S, D)),
            "wqkv": _w((lambda *s: torch.randn(*s, dtype=torch.bfloat16) * 0.05)(D, 3 * D)),
            "wo": _w((lambda *s: torch.randn(*s, dtype=torch.bfloat16) * 0.05)(D, D)),
        }
    _A_in = _A_setup()

    def _B_setup():
        B, S, D, F = 1, 2048, 640, 1536
        return {
            "x": _w((lambda *s: torch.randn(*s, dtype=torch.bfloat16) * 0.05)(B, S, D)),
            "w1": _w((lambda *s: torch.randn(*s, dtype=torch.bfloat16) * 0.2)(S, F) * (S ** -0.5)),
            "b1": _w((lambda *s: torch.randn(*s, dtype=torch.bfloat16) * 3.2)(F) * 0.02),
            "w2": _w((lambda *s: torch.randn(*s, dtype=torch.bfloat16) * 0.4)(F, S) * (F ** -0.5)),
            "b2": _w((lambda *s: torch.randn(*s, dtype=torch.bfloat16) * 0.8)(S) * 0.02),
        }
    _B_in = _B_setup()

    return {
        "A_x": _A_in["x"],
        "A_wqkv": _A_in["wqkv"],
        "A_wo": _A_in["wo"],
        "B_x": _B_in["x"],
        "B_w1": _B_in["w1"],
        "B_b1": _B_in["b1"],
        "B_w2": _B_in["w2"],
        "B_b2": _B_in["b2"],
    }

def reference(A_x, A_wqkv, A_wo, B_x, B_w1, B_b1, B_w2, B_b2):
    def _A_ref(x, wqkv, wo):
        B, S, D = x.shape
        H = 32; Dh = D // H
        qkv = (lambda x, *d: x.permute(*d))((x @ wqkv).reshape(B, S, 3, H, Dh), 2, 0, 3, 1, 4)
        q, k, v = qkv[0], qkv[1], qkv[2]
        phi = lambda t: torch.where(t > 0, t + 1, torch.exp(t)) + 1e-6
        pq, pk = phi(q), phi(k)
        kv = torch.einsum("bhsd,bhse->bhde", pk, v)
        z = torch.einsum("bhsd->bhd", pk)
        num = torch.einsum("bhqd,bhde->bhqe", pq, kv)
        den = torch.einsum("bhqd,bhd->bhq", pq, z)[..., None] + 1e-6
        o = num / den
        return (lambda x, *d: x.permute(*d))(o, 0, 2, 1, 3).reshape(B, S, D) @ wo

    def _B_ref(x, w1, b1, w2, b2):
        B, S, D = x.shape
        h = _layernorm(x, axis=-1)
        u = torch.einsum("bsd,sf->bdf", h, w1) + b1
        u = _gelu(u)
        y = torch.einsum("bdf,fs->bds", u, w2) + b2
        return (lambda x, *d: x.permute(*d))(y, 0, 2, 1)

    x = A_x
    h = x + _A_ref(_layernorm(x, axis=-1), A_wqkv, A_wo)
    h2 = h + _B_ref(_layernorm(h, axis=-1), B_w1, B_b1, B_w2, B_b2)
    return h2
```

```python
import re
import subprocess
import os
import tempfile

REG_RE = re.compile(r'^(-|abs\(|-abs\()?([vas])(\d+|\[(\d+):(\d+)\])\)?$')


def regs_of(op):
    op = op.strip()
    if op == 'vcc':
        return {('s', 106), ('s', 107)}
    if op == 'vcc_lo':
        return {('s', 106)}
    if op == 'exec':
        return {('s', 126), ('s', 127)}
    if op == 'm0':
        return {('s', 124)}
    m = REG_RE.match(op)
    if not m:
        return set()
    k = m.group(2)
    if m.group(4) is not None:
        return {(k, i) for i in range(int(m.group(4)), int(m.group(5)) + 1)}
    return {(k, int(m.group(3)))}


TRANS = ('v_exp_f32', 'v_log_f32', 'v_rcp_f32', 'v_rsq_f32', 'v_sqrt_f32', 'v_sin_f32', 'v_cos_f32')
NODST_S = ('s_cmp', 's_waitcnt', 's_barrier', 's_branch', 's_cbranch', 's_nop', 's_setprio', 's_sleep',
           's_endpgm', 's_bitcmp')


class Ins:
    __slots__ = ('text', 'mn', 'ops', 'mods', 'defs', 'uses', 'cls', 'label', 'srcC', 'srcAB', 'passes', 'size', 'data')

    def __init__(self, text):
        self.text = text
        self.label = None
        self.defs = set()
        self.uses = set()
        self.srcC = set()
        self.srcAB = set()
        self.data = set()
        self.passes = 0
        self.size = None
        t = text.split(';')[0].strip()
        if t.endswith(':'):
            self.label = t[:-1]
            self.cls = 'label'
            self.mn = ''
            self.ops = []
            return
        if t.startswith('.') or not t:
            self.cls = 'dir'
            self.mn = ''
            self.ops = []
            return
        parts = t.split(None, 1)
        self.mn = mn = parts[0]
        rest = parts[1] if len(parts) > 1 else ''
        ops = []
        cur = ''
        depth = 0
        for ch in rest:
            if ch in '[(':
                depth += 1
            if ch in '])':
                depth -= 1
            if ch == ',' and depth == 0:
                ops.append(cur.strip())
                cur = ''
            else:
                cur += ch
        last = cur.strip().split(None, 1)
        self.mods = ''
        if last:
            ops.append(last[0])
            if len(last) > 1:
                self.mods = last[1]
        self.ops = ops
        R = [regs_of(o) for o in ops]
        allr = set().union(*R) if R else set()
        rest_r = set().union(*R[1:]) if len(R) > 1 else set()
        if mn.startswith('v_mfma'):
            self.cls = 'mfma'
            self.defs = R[0]
            self.srcAB = R[1] | R[2]
            self.srcC = R[3]
            self.uses = rest_r
            self.passes = 8 if '32x32' in mn else (2 if '4x4x4' in mn else 4)
        elif mn.startswith('v_'):
            self.cls = 'valu'
            if 'swap' in mn:
                self.defs = allr
                self.uses = allr
            else:
                self.defs = set(R[0])
                self.uses = set(rest_r)
                if mn.startswith(('v_add_co', 'v_sub_co', 'v_addc_co', 'v_subb_co')):
                    self.defs |= R[1]
                    self.uses = set().union(*R[2:])
                if mn.startswith(('v_fmac', 'v_dot2c', 'v_writelane')) or 'dpp' in mn or 'row_' in self.mods or 'quad_perm' in self.mods:
                    self.uses |= R[0]
        elif mn.startswith('ds_'):
            self.cls = 'ds'
            if mn.startswith(('ds_read', 'ds_bpermute', 'ds_swizzle', 'ds_permute')):
                self.defs = R[0]
                self.uses = rest_r
            else:
                self.uses = allr
        elif mn.startswith(('buffer_', 'global_')):
            self.cls = 'vmem'
            lds = re.search(r'\blds\b', self.mods) is not None or 'load_lds' in mn
            if 'load' in mn and not lds:
                self.defs = R[0]
                self.uses = rest_r
            elif 'atomic' in mn and re.search(r'\bsc0\b', self.mods):
                self.defs = R[0]
                self.uses = allr if mn.startswith('buffer_') else rest_r
            else:
                self.uses = set(allr)
                if lds:
                    self.uses |= {('s', 124)}
                if 'store' in mn and ('x4' in mn or 'x3' in mn):
                    self.data = R[0] if mn.startswith('buffer_') else R[1]
        elif mn.startswith(('s_load', 's_memtime', 's_memrealtime', 's_buffer_load')):
            self.cls = 'smem'
            self.defs = R[0]
            self.uses = rest_r
        elif mn.startswith('s_'):
            self.cls = 'salu'
            if mn.startswith(NODST_S):
                self.uses = allr
            else:
                self.defs = set(R[0])
                self.uses = set(rest_r)
                if 'saveexec' in mn:
                    self.defs |= regs_of('exec')
                if mn.startswith(('s_addk', 's_mulk', 's_bitset', 's_cmov')):
                    self.uses |= R[0]
        else:
            raise ValueError('unknown instruction: ' + text)

    def states(self):
        if self.cls in ('label', 'dir'):
            return 0
        if self.mn == 's_nop':
            return int(self.ops[0], 0) + 1
        return 1


class Pend:
    __slots__ = ('regs', 'maybe')

    def __init__(self, regs, maybe):
        self.regs = regs
        self.maybe = maybe


class Asm:
    def __init__(self):
        self.ins = []
        self.vm = []
        self.lg = []
        self.sm = []
        self.maybe = 0
        self.ncond = 0

    def _need(self, q, idx):
        return sum(1 for p in q[idx + 1:] if not p.maybe or p.maybe == self.maybe)

    def _emit_wait(self, vm=None, lg=None):
        parts = []
        if vm is not None:
            parts.append('vmcnt(%d)' % min(vm, 63))
        if lg is not None:
            parts.append('lgkmcnt(%d)' % min(lg, 15))
        if parts:
            self.ins.append(Ins('s_waitcnt ' + ' '.join(parts)))

    def _retire(self, q, idx):
        if self.maybe:
            keep = [p for p in q[:idx + 1] if p.maybe != self.maybe]
            self._cond_kept.extend((q, p) for p in keep)
        del q[:idx + 1]

    def wait(self, *toks):
        vi = li = -1
        for t in toks:
            if t is None:
                continue
            if t in self.vm:
                vi = max(vi, self.vm.index(t))
            if t in self.lg:
                li = max(li, self.lg.index(t))
        vm = lg = None
        if vi >= 0:
            vm = self._need(self.vm, vi)
        if li >= 0:
            lg = self._need(self.lg, li)
        self._emit_wait(vm, lg)
        if vi >= 0:
            self._retire(self.vm, vi)
        if li >= 0:
            self._retire(self.lg, li)

    def drain(self, vm=True, lg=True, force=False):
        v = 0 if (vm and (self.vm or force)) else None
        l = 0 if (lg and (self.lg or self.sm or force)) else None
        self._emit_wait(v, l)
        if v is not None and self.vm:
            self._retire(self.vm, len(self.vm) - 1)
        if l is not None:
            if self.lg:
                self._retire(self.lg, len(self.lg) - 1)
            if self.sm:
                self._retire(self.sm, len(self.sm) - 1)

    def cond_begin(self):
        assert not self.maybe
        self.ncond += 1
        self.maybe = self.ncond
        self._cond_kept = []

    def cond_end(self):
        self.maybe = 0
        for q in (self.vm, self.lg, self.sm):
            back = [p for (qq, p) in self._cond_kept if qq is q]
            q[:0] = back
        self._cond_kept = []

    def save_state(self):
        return (list(self.vm), list(self.lg), list(self.sm))

    def set_state(self, st):
        self.vm, self.lg, self.sm = list(st[0]), list(st[1]), list(st[2])

    def e(self, text):
        i = Ins(text)
        if i.cls in ('label', 'dir'):
            self.ins.append(i)
            return None
        touched = i.defs | i.uses
        vi = li = -1
        for n, p in enumerate(self.vm):
            if p.regs & touched:
                vi = n
        for n, p in enumerate(self.lg):
            if p.regs & touched:
                if i.cls == 'ds' and not (p.regs & i.uses):
                    continue
                li = n
        smhit = any(p.regs & touched for p in self.sm)
        vm = self._need(self.vm, vi) if vi >= 0 else None
        lg = self._need(self.lg, li) if li >= 0 else None
        if smhit:
            lg = 0
            li = len(self.lg) - 1
        self._emit_wait(vm, lg)
        if vi >= 0:
            self._retire(self.vm, vi)
        if li >= 0:
            self._retire(self.lg, li)
        if smhit:
            self._retire(self.sm, len(self.sm) - 1)
        self.ins.append(i)
        tok = None
        if i.cls == 'vmem':
            tok = Pend(set(i.defs), self.maybe)
            self.vm.append(tok)
        elif i.cls == 'ds':
            tok = Pend(set(i.defs), self.maybe)
            self.lg.append(tok)
        elif i.cls == 'smem':
            tok = Pend(set(i.defs), self.maybe)
            self.sm.append(tok)
        return tok

    def block(self, text):
        for ln in text.strip('\n').split('\n'):
            ln = ln.strip()
            if ln and not ln.startswith(';'):
                self.e(ln)

    def run(self, item):
        if callable(item):
            return item()
        return self.e(item)

    def weave(self, main, fill, start=0, end=None):
        n = len(main)
        end = n if end is None else end
        span = max(end - start, 1)
        k = 0
        for idx, m in enumerate(main):
            self.run(m)
            if start <= idx < end:
                tgt = (len(fill) * (idx - start + 1) + span - 1) // span
                while k < tgt:
                    self.run(fill[k])
                    k += 1
        while k < len(fill):
            self.run(fill[k])
            k += 1

    @staticmethod
    def _required(p, c):
        need = 0
        V = lambda s: {r for r in s if r[0] in 'va'}
        S = lambda s: {r for r in s if r[0] == 's'}
        if p.cls == 'mfma':
            d = p.defs
            tab = {2: (5, 4), 4: (8, 6), 8: (12, 10)}[p.passes]
            if c.cls == 'mfma':
                if d & c.srcAB:
                    need = max(need, tab[0])
                if d & c.srcC:
                    if d == c.srcC and c.passes == p.passes:
                        need = max(need, 2 if p.passes == 2 else 0)
                    else:
                        need = max(need, tab[1])
                elif d & c.defs:
                    need = max(need, tab[1])
            elif c.cls in ('valu', 'vmem', 'ds'):
                if d & (c.uses | c.defs):
                    need = max(need, tab[0])
            if c.cls in ('valu', 'vmem', 'ds') and (p.srcC & c.defs):
                need = max(need, {2: 1, 4: 3, 8: 7}[p.passes])
        if p.cls == 'valu':
            vd = V(p.defs)
            sd = S(p.defs)
            if c.cls == 'mfma' and vd & c.uses:
                need = max(need, 2)
            if c.cls == 'valu':
                dpp = 'dpp' in c.mn or 'row_' in c.mods or 'quad_perm' in c.mods
                if dpp and vd & c.uses:
                    need = max(need, 2)
                if 'permlane' in c.mn and vd & c.uses:
                    need = max(need, 2)
                if c.mn.startswith(('v_readlane', 'v_readfirstlane')) and vd & c.uses:
                    need = max(need, 1)
                if p.mn.startswith(TRANS) and vd & c.uses:
                    need = max(need, 1)
                if p.mn.startswith('v_dot') and vd & (c.uses | c.defs):
                    need = max(need, 3)
                if ('sdwa' in p.mn or ('op_sel' in p.mods and not p.mn.startswith(('v_pk_', 'v_fma_mix_f32')))) and vd & (c.uses | c.defs):
                    need = max(need, 1)
                if sd & c.uses:
                    need = max(need, 4 if c.mn.startswith(('v_readlane', 'v_writelane')) else 2)
            if c.cls == 'vmem' and sd & c.uses:
                need = max(need, 5)
            if c.cls in ('salu', 'smem') and sd & c.uses:
                need = max(need, 1)
            if c.mn.startswith('s_cbranch_vcc') and sd & regs_of('vcc'):
                need = max(need, 1)
        if p.cls == 'salu' and ('s', 124) in p.defs and c.cls == 'vmem' and ('s', 124) in c.uses:
            need = max(need, 1)
        if p.cls == 'vmem' and p.data and (p.data & c.defs):
            need = max(need, 2 if c.cls in ('valu', 'mfma') else 1)
        return need

    def pad_hazards(self):
        out = []
        sites = {}
        WIN = 20

        def scan(pos, dist, c, seen):
            worst = 0
            j = pos
            while j >= 0 and dist < WIN:
                p = out[j]
                if p.cls == 'label':
                    for s in sites.get(p.label, []):
                        if s not in seen:
                            worst = max(worst, scan(s, dist, c, seen | {s}))
                elif p.cls != 'dir':
                    if p.mn in ('s_branch', 's_endpgm') and j != pos:
                        break
                    if p.mn in ('s_branch', 's_endpgm') and j == pos and pos not in seen:
                        break
                    worst = max(worst, self._required(p, c) - dist)
                    dist += p.states()
                j -= 1
            return worst

        for c in self.ins:
            if c.cls not in ('label', 'dir'):
                w = scan(len(out) - 1, 0, c, frozenset())
                while w > 0:
                    n = min(w, 16)
                    out.append(Ins('s_nop %d' % (n - 1)))
                    w -= n
            out.append(c)
            if c.mn.startswith(('s_branch', 's_cbranch')):
                sites.setdefault(c.ops[0], []).append(len(out) - 1)
        self.ins = out

    def measure(self):
        real = [i for i in self.ins if i.cls not in ('label', 'dir')]
        src = '.amdgcn_target "amdgcn-amd-amdhsa--gfx950"\n.text\n' + '\n'.join(i.text for i in self.ins if i.cls != 'dir') + '\n'
        with tempfile.TemporaryDirectory() as td:
            open(td + '/a.s', 'w').write(src)
            r = subprocess.run(['clang', '-x', 'assembler', '-target', 'amdgcn-amd-amdhsa', '-mcpu=gfx950',
                                '-c', td + '/a.s', '-o', td + '/a.o'], capture_output=True, text=True)
            if r.returncode:
                print(r.stderr[:3000])
                raise SystemExit(1)
            d = subprocess.run(['llvm-objdump', '-d', '--mcpu=gfx950', td + '/a.o'], capture_output=True, text=True).stdout
        sizes = []
        names = []
        for ln in d.split('\n'):
            m = re.search(r'//\s*[0-9A-F]{12}:\s*((?:[0-9A-F]{8}\s*)+)', ln)
            if m:
                sizes.append(4 * len(m.group(1).split()))
                names.append(ln.split()[0])
        assert len(sizes) == len(real), (len(sizes), len(real))
        for i, s, nm in zip(real, sizes, names):
            i.size = (s, nm)

    def align8(self):
        self.measure()
        out = []
        pos = 0
        cand = None
        npro = nnop = 0
        for i in self.ins:
            if i.cls in ('label', 'dir'):
                out.append(i)
                continue
            sz, nm = i.size
            if sz >= 8 and pos % 32 == 28:
                if cand is not None:
                    c = out[cand]
                    n = Ins(c.text.replace(c.mn, c.mn.replace('_e32', '') + '_e64', 1))
                    n.size = (8, n.mn)
                    out[cand] = n
                    pos += 4
                    npro += 1
                else:
                    nnop += 1
            if pos % 32 == 0:
                cand = None
            if (pos % 32) + sz > 32:
                cand = None
            if sz == 4 and i.cls == 'valu' and nm.endswith('_e32') and not i.mn.startswith(
                    ('v_readfirstlane', 'v_permlane', 'v_accvgpr', 'v_dot2c', 'v_swap', 'v_cmp', 'v_cndmask', 'v_add_co', 'v_addc_co')):
                cand = len(out)
            out.append(i)
            pos += sz
        self.ins = out
        return pos, npro, nnop

    def text(self):
        return '\n'.join((i.text if i.cls in ('label', 'dir') else '    ' + i.text) for i in self.ins) + '\n'
```

```python
import sys
import struct
import argparse
from asmlib import Asm

NAME = 'sequential_preLN__linear_attn_block__mixer_token_mlp__prompt_kernel'

FKV, FQ, FB, FC = 0x0000, 0x1000, 0x2000, 0x3000
STATS = 0x4000
KV = 0x8000
PQ = 0x100000
H = 0x400000
U = 0x700000
TS = 0xA00000
WS_SIZE = 0x1000000
OOB = 0x40000000
NINIT = 24
SPIN_MAX = 20000

SX, SWQ, SWO, SW1, SW2, SOUT, SWS = 's[4:7]', 's[8:11]', 's[12:15]', 's[16:19]', 's[20:23]', 's[24:27]', 's[28:31]'
PB1, PB2, PDBG = 's[32:33]', 's[34:35]', 's[36:37]'
sW, sXCD, sI = 's38', 's39', 's40'
sWH, sWP = 's41', 's42'
sSPIN = 's43'


def fbits(x):
    return '0x%08x' % struct.unpack('<I', struct.pack('<f', x))[0]


def vr(b, n=1):
    return 'v%d' % b if n == 1 else 'v[%d:%d]' % (b, b + n - 1)


def ar(b, n=1):
    return 'a%d' % b if n == 1 else 'a[%d:%d]' % (b, b + n - 1)


LOG2E = 1.4426950408889634
M16 = 'v_mfma_f32_16x16x32_bf16'
M32 = 'v_mfma_f32_32x32x16_bf16'


class Gen:
    def __init__(self, stamps=False, upto='D', code_lines=512):
        self.a = Asm()
        self.stamps = stamps
        self.upto = upto
        self.code_lines = code_lines
        self.nlab = 0

    def lab(self, s):
        self.nlab += 1
        return 'L_%s_%d' % (s, self.nlab)

    def stamp(self, n):
        if self.stamps:
            self.a.e('s_memrealtime s[%d:%d]' % (70 + 2 * n, 71 + 2 * n))

    def poll(self, vF, load, val, issued=False):
        a = self.a
        ok, spin = self.lab('ok'), self.lab('spin')
        if issued:
            a.e('v_cmp_ne_u32 vcc, %s, %s' % (val, vF))
            a.e('s_cbranch_vccz %s' % ok)
            a.cond_begin()
        a.e('s_mov_b32 %s, 0' % sSPIN)
        a.e(spin + ':')
        a.e(load)
        a.e('s_add_u32 %s, %s, 1' % (sSPIN, sSPIN))
        a.e('s_cmp_ge_u32 %s, %d' % (sSPIN, SPIN_MAX))
        a.drain(vm=True, lg=False)
        a.e('s_cbranch_scc1 %s' % ok)
        a.e('v_cmp_ne_u32 vcc, %s, %s' % (val, vF))
        a.e('s_nop 1')
        a.e('s_cbranch_vccnz %s' % spin)
        if issued:
            a.cond_end()
        a.e(ok + ':')

    def set_flag(self, base, sIdx, vT):
        a = self.a
        skip = self.lab('nf')
        a.e('s_cmp_lg_u32 %s, 0' % sW)
        a.e('s_cbranch_scc1 %s' % skip)
        a.cond_begin()
        a.e('s_lshl_b32 s3, %s, 4' % sIdx)
        a.e('s_add_u32 s3, s3, %d' % base)
        a.e('v_mov_b32 %s, 1' % vT)
        a.e('s_mov_b64 exec, 1')
        a.e('buffer_store_dword %s, off, %s, s3 sc1' % (vT, SWS))
        a.e('s_mov_b64 exec, -1')
        a.cond_end()
        a.e(skip + ':')

    def entry(self):
        a = self.a
        a.block(f'''
        s_cmp_ge_u32 s2, 256
        s_cbranch_scc1 L_end
        s_load_dwordx2 s[4:5], s[0:1], 0
        s_load_dwordx2 s[8:9], s[0:1], 8
        s_load_dwordx2 s[28:29], s[0:1], 80
        s_load_dwordx2 s[12:13], s[0:1], 16
        s_load_dwordx2 s[16:17], s[0:1], 32
        s_load_dwordx2 s[32:33], s[0:1], 40
        s_load_dwordx2 s[20:21], s[0:1], 48
        s_load_dwordx2 s[34:35], s[0:1], 56
        s_load_dwordx2 s[24:25], s[0:1], 64
        s_load_dwordx2 s[36:37], s[0:1], 72
        ''')
        self.stamp(0)
        a.block(f'''
        s_getpc_b64 s[44:45]
        v_lshrrev_b32 v1, 6, v0
        s_and_b32 s44, s44, 0xffffff00
        v_readfirstlane_b32 {sW}, v1
        v_and_b32 v0, 63, v0
        s_and_b32 {sXCD}, s2, 7
        s_lshr_b32 {sI}, s2, 3
        s_lshl_b32 s3, {sI}, 2
        s_add_u32 s3, s3, {sW}
        s_lshl_b32 s3, s3, 2
        v_and_b32 v1, 3, v0
        v_add_u32 v1, s3, v1
        v_min_u32 v1, {self.code_lines - 1}, v1
        v_lshlrev_b32 v1, 7, v1
        global_load_dword v255, v1, s[44:45]
        s_lshr_b32 {sWH}, {sW}, 1
        s_and_b32 {sWP}, {sW}, 1
        s_mov_b32 s6, {2048 * 1280}
        s_mov_b32 s7, 0x20000
        s_mov_b32 s10, {640 * 3840}
        s_mov_b32 s11, 0x20000
        s_mov_b32 s14, {640 * 1280}
        s_mov_b32 s15, 0x20000
        s_mov_b32 s18, {2048 * 3072}
        s_mov_b32 s19, 0x20000
        s_mov_b32 s22, {1536 * 4096}
        s_mov_b32 s23, 0x20000
        s_mov_b32 s26, {2048 * 1280}
        s_mov_b32 s27, 0x20000
        s_mov_b32 s30, {WS_SIZE}
        s_mov_b32 s31, 0x20000
        v_and_b32 v1, 15, v0
        v_lshrrev_b32 v2, 4, v0
        v_lshrrev_b32 v3, 5, v0
        v_bfe_u32 v4, v0, 2, 2
        v_and_b32 v5, 3, v0
        v_and_b32 v6, 1, v2
        v_lshlrev_b32 v7, 4, v0
        ''')

    def phaseA(self, role):
        a = self.a
        kv = role == 'kv'
        RT, CT = (6, 3) if kv else (4, 4)
        ST = 3 if kv else 4
        NX, NW = (3, 5) if kv else (4, 4)
        WOFF = 12288 if kv else 16384
        sROW0, sCOL, sFIDX, sSX, sSWo, sMX, sMW = 's44', 's45', 's46', 's47', 's48', 's49', 's50'
        vACC, vCS, vGR, vSX, vONE = 16, 88, 104, 120, 136
        vXD, vWD = 140, 144
        vAA, vBA = 150, 162
        acc = lambda t, c: vACC + (t * CT + c) * 4
        FR = 36
        fA = lambda s, t: s * FR + t * 4
        fB = lambda s, c: s * FR + RT * 4 + c * 4

        if kv:
            a.block(f'''
            s_and_b32 s3, {sXCD}, 3
            s_lshl_b32 s3, s3, 1
            s_and_b32 s51, {sI}, 1
            s_add_u32 s51, s51, s3
            s_lshr_b32 s3, {sXCD}, 2
            s_mul_i32 s3, s3, 11
            s_lshr_b32 s52, {sI}, 1
            s_add_u32 s52, s52, s3
            s_mul_i32 {sROW0}, s52, 96
            s_mul_i32 {sCOL}, s51, 160
            s_add_u32 {sCOL}, {sCOL}, 1280
            s_mul_i32 {sFIDX}, s51, 22
            s_add_u32 {sFIDX}, {sFIDX}, s52
            ''')
        else:
            a.block(f'''
            s_sub_u32 s53, {sI}, 22
            s_and_b32 s51, {sXCD}, 3
            s_lshl_b32 s3, s51, 1
            s_add_u32 s3, s3, s53
            s_sub_u32 s3, s3, 8
            s_cmp_lt_u32 s53, 8
            s_cselect_b32 s52, s53, s3
            s_cselect_b32 s51, s51, 4
            s_lshr_b32 s3, {sXCD}, 2
            s_lshl_b32 s3, s3, 3
            s_add_u32 s52, s52, s3
            s_lshl_b32 {sROW0}, s52, 7
            s_lshl_b32 {sCOL}, s51, 8
            s_mul_i32 {sFIDX}, s52, 5
            s_add_u32 {sFIDX}, {sFIDX}, s51
            ''')

        a.block(f'''
        s_mul_i32 s3, {sW}, {NX}
        s_lshl_b32 {sMX}, s3, 10
        s_lshl_b32 s54, s3, 3
        s_add_u32 s54, s54, {sROW0}
        s_and_b32 s3, s3, 1
        s_lshl_b32 s3, s3, 2
        v_lshrrev_b32 v8, 3, v0
        v_add_u32 v8, s54, v8
        v_mul_u32_u24 v8, 1280, v8
        v_and_b32 v9, 7, v0
        v_xor_b32 v9, v9, v2
        v_xor_b32 v9, s3, v9
        v_lshl_add_u32 v{vXD}, v9, 4, v8
        ''')
        for i in range(1, NX):
            a.e(f'v_xor_b32 v8, 64, v{vXD + i - 1}')
            a.e(f'v_add_u32 v{vXD + i}, {10240 - 1024}, v8')
        if kv:
            a.block(f'''
            s_mul_i32 {sMW}, {sW}, 5120
            s_mul_i32 s3, {sW}, {16 * 3840}
            s_add_u32 s3, s3, {sCOL}
            s_movk_i32 s54, 3277
            ''')
            for i in range(NW):
                bias = 1024 * (i & 3)
                a.block(f'''
                v_add_u32 v8, {64 * i}, v0
                v_mul_u32_u24 v9, s54, v8
                v_lshrrev_b32 v9, 16, v9
                v_mul_u32_u24 v10, 20, v9
                v_sub_u32 v8, v8, v10
                v_cmp_le_u32 vcc, 10, v8
                v_subrev_u32 v10, 10, v8
                v_cndmask_b32 v8, v8, v10, vcc
                v_cndmask_b32 v10, 0, 1, vcc
                v_lshrrev_b32 v11, 3, v9
                v_xor_b32 v10, v10, v11
                v_mul_u32_u24 v10, 1280, v10
                v_mul_u32_u24 v9, 3840, v9
                v_lshl_add_u32 v8, v8, 4, v10
                v_add3_u32 v8, v8, v9, s3
                v_subrev_u32 v{vWD + i}, {bias}, v8
                ''')
        else:
            a.block(f'''
            s_lshl_b32 {sMW}, {sW}, 12
            s_mul_i32 s3, {sW}, {16 * 3840}
            s_add_u32 s3, s3, {sCOL}
            v_lshlrev_b32 v8, 1, v2
            v_xor_b32 v8, v8, v1
            v_mul_u32_u24 v9, 3840, v2
            v_lshl_add_u32 v8, v8, 4, v9
            v_add_u32 v{vWD}, s3, v8
            v_add_u32 v{vWD + 1}, {4 * 3840 - 1024}, v{vWD}
            v_xor_b32 v8, 128, v8
            v_add_u32 v8, s3, v8
            v_add_u32 v{vWD + 2}, {2 * (4 * 3840 - 1024)}, v8
            v_add_u32 v{vWD + 3}, {3 * (4 * 3840 - 1024)}, v8
            ''')
        a.e(f's_add_u32 {sMW}, {sMW}, {WOFF}')
        a.drain(vm=False, lg=True)

        if not kv:
            skip = self.lab('noz')
            a.e('s_cmp_ge_u32 s53, 3')
            a.e(f's_cbranch_scc1 {skip}')
            a.cond_begin()
            a.block(f'''
            s_mul_i32 s3, {sXCD}, 3
            s_add_u32 s3, s3, s53
            s_lshl_b32 s3, s3, 2
            s_add_u32 s3, s3, {sW}
            s_lshl_b32 s3, s3, 10
            v_mov_b32 v8, 0
            v_mov_b32 v9, 0
            v_mov_b32 v10, 0
            v_mov_b32 v11, 0
            buffer_store_dwordx4 v[8:11], v7, {SWS}, s3 offen sc1
            ''')
            a.cond_end()
            a.e(skip + ':')

        toks = {}

        def dma_items(st):
            slot = (st % 5) * 32768
            it = []
            it.append(f's_mov_b32 {sSX}, {st * 128}')
            it.append(f's_add_u32 m0, {sMX}, {slot}')
            for i in range(NX):
                it.append(f'buffer_load_dwordx4 v{vXD + i}, {SX}, {sSX} offen offset:{1024 * i} lds')
            it.append(f's_mov_b32 {sSWo}, {st * 64 * 3840}')
            it.append(f's_add_u32 m0, {sMW}, {slot}')
            for i in range(NW):
                if i == 4:
                    it.append(f's_add_u32 m0, {sMW}, {slot + 4096}')
                ins = f'buffer_load_dwordx4 v{vWD + i}, {SWQ}, {sSWo} offen offset:{1024 * (i & 3)} lds'
                if i == NW - 1:
                    it.append(lambda ins=ins, st=st: toks.__setitem__(st, a.e(ins)))
                else:
                    it.append(ins)
            return it

        for st in range(5):
            for x in dma_items(st):
                a.run(x)

        a.block(f'''
        s_lshl_b32 s3, {sWP}, 2
        v_lshrrev_b32 v8, 1, v1
        v_xor_b32 v8, v8, v2
        v_xor_b32 v8, s3, v8
        v_lshlrev_b32 v8, 4, v8
        v_lshl_add_u32 v8, v1, 7, v8
        s_mul_i32 s3, {sWH}, {ST * 2048}
        v_add_u32 v{vAA}, s3, v8
        v_xor_b32 v{vAA + 1}, 64, v{vAA}
        ''')
        NA = 4 if kv else 2
        NB = 6 if kv else 8
        if kv:
            a.block(f'''
            s_sub_u32 s3, 6144, s3
            v_add_u32 v{vAA + 2}, s3, v8
            v_xor_b32 v{vAA + 3}, 64, v{vAA + 2}
            v_lshl_add_u32 v8, v2, 3, v4
            v_mul_u32_u24 v8, 320, v8
            s_mul_i32 s3, {sW}, 40
            s_add_u32 s3, s3, {WOFF}
            v_add_u32 v8, s3, v8
            v_mul_u32_u24 v9, 160, v6
            v_sub_u32 v10, 160, v9
            v_lshl_add_u32 v11, v5, 3, v8
            v_add_u32 v12, v11, v9
            v_add_u32 v13, v11, v10
            v_and_b32 v11, 1, v5
            v_cmp_eq_u32 vcc, 0, v11
            v_cndmask_b32 v9, v10, v9, vcc
            v_add3_u32 v14, v8, v9, 32
            s_mul_i32 s3, {sWP}, 10240
            s_sub_u32 s54, 10240, s3
            ''')
            for c in range(3):
                a.e(f'v_add_u32 v{vBA + 2 * c}, s3, v{12 + c}')
                a.e(f'v_add_u32 v{vBA + 2 * c + 1}, s54, v{12 + c}')
        else:
            a.block(f'''
            v_lshl_add_u32 v8, v2, 3, v4
            v_lshlrev_b32 v8, 8, v8
            v_lshl_add_u32 v8, v5, 3, v8
            v_lshl_add_u32 v9, v6, 2, v4
            s_lshl_b32 s3, {sWP}, 2
            v_xor_b32 v9, s3, v9
            v_lshl_add_u32 v8, v9, 5, v8
            s_lshl_b32 s3, {sWP}, 13
            s_add_u32 s3, s3, {WOFF}
            v_add_u32 v8, s3, v8
            ''')
            for c in range(4):
                a.e(f'v_xor_b32 v{vBA + 2 * c}, {32 * c}, v8')
                a.e(f'v_xor_b32 v{vBA + 2 * c + 1}, {32 * c + 8192}, v8')
        for s in (1, 2):
            for i in range(NA):
                a.e(f'v_add_u32 v{vAA + 4 * s + i}, {65536 * s}, v{vAA + i}')
            for i in range(NB):
                a.e(f'v_add_u32 v{vBA + 8 * s + i}, {65536 * s}, v{vBA + i}')
        for i in range(4):
            a.e(f'v_mov_b32 v{vONE + i}, 0x3f803f80')
        TROW = 1280 if kv else 1024

        def reads(st, ks):
            slot = st % 5
            s, off = slot // 2, (slot & 1) * 32768
            it = []
            for c in range(CT):
                for t in range(2):
                    it.append(f'ds_read_b64_tr_b16 {ar(fB(ks, c) + 2 * t, 2)}, v{vBA + 8 * s + 2 * c + ks} offset:{off + t * TROW}')
                t = c
                it.append(f'ds_read_b128 {ar(fA(ks, t), 4)}, v{vAA + 4 * s + 2 * (t // ST) + ks} offset:{off + (t % ST) * 2048}')
            for t in range(CT, RT):
                it.append(f'ds_read_b128 {ar(fA(ks, t), 4)}, v{vAA + 4 * s + 2 * (t // ST) + ks} offset:{off + (t % ST) * 2048}')
            return it

        def mfmas(st, ks):
            first = st == 0 and ks == 0
            C = lambda r: '0' if first else vr(r, 4)
            it = []
            if ks == 0:
                for t in range(ST):
                    it.append(f'{M16} {vr(vGR + 4 * t, 4)}, {ar(fA(ks, t), 4)}, {ar(fA(ks, t), 4)}, {C(vGR + 4 * t)}')
                    it.append(f'{M16} {vr(vSX + 4 * t, 4)}, {vr(vONE, 4)}, {ar(fA(ks, t), 4)}, {C(vSX + 4 * t)}')
            for c in range(CT):
                it.append(f'{M16} {vr(vCS + 4 * c, 4)}, {vr(vONE, 4)}, {ar(fB(ks, c), 4)}, {C(vCS + 4 * c)}')
            for t in range(RT):
                for c in range(CT):
                    it.append(f'{M16} {vr(acc(t, c), 4)}, {ar(fA(ks, t), 4)}, {ar(fB(ks, c), 4)}, {C(acc(t, c))}')
            return it

        PX = 28672 + 2048
        vT0, vPW, vPR, vTW, vTR = 190, 200, 201, 202, 203
        vMU, vRS = 204, 228
        vI = 252
        a.block(f'''
        s_mul_i32 s3, {sWH}, {ST * 16 * 8}
        s_lshl_b32 s54, {sWP}, 10
        s_add_u32 s3, s3, s54
        s_add_u32 s3, s3, {PX}
        v_lshl_add_u32 v{vPW}, v1, 3, s3
        s_mul_i32 s3, {sWH}, {0 if kv else 512}
        s_add_u32 s3, s3, {PX}
        v_lshl_add_u32 v{vPR}, v0, 3, s3
        s_lshl_b32 s3, {sW}, 15
        s_add_u32 s3, s3, 28672
        v_lshl_add_u32 v{vTW}, v0, 2, s3
        v_lshl_add_u32 v{vTR}, v2, 4, s3
        s_mov_b32 s56, 0xaaaaaaaa
        s_mov_b32 s57, 0xaaaaaaaa
        s_mov_b32 s58, 0xcccccccc
        s_mov_b32 s59, 0xcccccccc
        s_mov_b32 s60, 0x00f0000f
        s_mov_b32 s61, 0xf0000f00
        v_mov_b32 v{vI + 1}, 0
        ''')
        if kv:
            a.block(f'''
            s_mul_i32 s3, {sWH}, 192
            s_sub_u32 s54, 192, s3
            v_add_u32 v199, s54, v{vTR}
            v_add_u32 v{vTR}, s3, v{vTR}
            ''')

        a.wait(toks[0])
        a.e('s_barrier')
        self.stamp(1)
        if not kv:
            skip = self.lab('noarr')
            a.e(f's_lshl_b32 s3, {sW}, 2')
            a.e('s_add_u32 s3, s3, s53')
            a.e('s_cmp_ge_u32 s3, 3')
            a.e(f's_cbranch_scc1 {skip}')
            a.cond_begin()
            a.block(f'''
            v_mov_b32 v8, 1
            s_mov_b64 exec, 1
            global_atomic_add v{vI + 1}, v8, {PDBG} sc1
            s_mov_b64 exec, -1
            ''')
            a.cond_end()
            a.e(skip + ':')
        for x in reads(0, 0):
            a.e(x)
        carry = []
        initload = f'global_load_dword v{vI}, v{vI + 1}, {PDBG} sc1'
        for st in range(10):
            fill = reads(st, 1) + carry
            m = mfmas(st, 0)
            if st == 9:
                ex = []
                for t in range(ST):
                    g = vGR + 4 * t
                    ex += [f'v_cndmask_b32 v{vT0}, v{g}, v{g + 1}, s[56:57]',
                           f'v_cndmask_b32 v{vT0 + 1}, v{g + 2}, v{g + 3}, s[56:57]',
                           f'v_cndmask_b32 v{vSX + 4 * t + 1}, v{vT0}, v{vT0 + 1}, s[58:59]']
                a.weave(m[:12], fill)
                a.weave(m[12:], ex, 2)
                a.e('s_mov_b64 exec, s[60:61]')
                for t in range(ST):
                    a.e(f'ds_write_b64 v{vPW}, {vr(vSX + 4 * t, 2)} offset:{128 * t}')
                a.e('s_mov_b64 exec, -1')
            else:
                a.weave(m, fill, 0, len(m) - 4)
            a.drain(vm=False, lg=True)
            if st < 9:
                a.wait(toks[st + 1])
            a.e('s_barrier')
            m = mfmas(st, 1)
            carry = []
            if st < 9:
                fill = reads(st + 1, 0)
                if st + 5 < 10:
                    d = dma_items(st + 5)
                    h = NX + 2
                    fill = fill + d[:h]
                    carry = d[h:]
                if st == 8:
                    fill.append(initload)
                a.weave(m, fill, 0, len(m) - 3)
            else:
                ex = []
                NP = 2 if kv else 1
                for p in range(NP):
                    t = vT0 + 4 * p
                    ex += [f'ds_read_b64 {vr(t, 2)}, v{vPR} offset:{512 * p}',
                           f'ds_read_b64 {vr(t + 2, 2)}, v{vPR} offset:{512 * p + 1024}']
                a.weave(m[:4], ex)
                ex = []
                for p in range(NP):
                    t = vT0 + 4 * p
                    ex += [f'v_add_f32 v{t}, v{t}, v{t + 2}',
                           f'v_add_f32 v{t + 1}, v{t + 1}, v{t + 3}',
                           f'v_mul_f32 v{t}, {fbits(-1.0 / 640)}, v{t}',
                           f'v_mul_f32 v{t + 1}, {fbits(1.0 / 640)}, v{t + 1}',
                           f'v_fma_f32 v{t + 1}, -v{t}, v{t}, v{t + 1}',
                           f'v_max_f32 v{t + 1}, 0, v{t + 1}',
                           f'v_add_f32 v{t + 1}, {fbits(1e-5)}, v{t + 1}',
                           f'v_rsq_f32 v{t + 1}, v{t + 1}',
                           f'ds_write_b32 v{vTW}, v{t} offset:{256 * p}',
                           f'ds_write_b32 v{vTW}, v{t + 1} offset:{512 + 256 * p}']
                for t in range(RT):
                    ad = vTR if t < ST else 199
                    ex += [f'ds_read_b128 {vr(vMU + 4 * t, 4)}, v{ad} offset:{64 * (t % ST)}',
                           f'ds_read_b128 {vr(vRS + 4 * t, 4)}, v{ad} offset:{512 + 64 * (t % ST)}']
                a.weave(m[4:], ex, 2)
        self.stamp(2)

        vEPS, vNEL, vEPR, vMSK, vLO, vHI = 140, 142, 144, 146, 148, 149
        vE = 150
        vPK = 160
        a.block(f'''
        s_mov_b32 s62, {fbits(LOG2E)}
        s_mov_b32 s63, {fbits(LOG2E)}
        v_mov_b32 v{vEPS}, {fbits(1e-6)}
        v_mov_b32 v{vEPS + 1}, {fbits(1e-6)}
        v_mov_b32 v{vNEL}, {fbits(-1e-6 * LOG2E)}
        v_mov_b32 v{vNEL + 1}, {fbits(-1e-6 * LOG2E)}
        ''')

        def tile_ops(t, c, kind, out, e):
            r = acc(t, c)
            stg = []
            P = lambda x: vr(x, 2)
            stg.append([f'v_pk_fma_f32 {P(r + h)}, {P(vMU + 4 * t + h)}, {P(vCS + 4 * c)}, {P(r + h)}' for h in (0, 2)])
            if kind == 'v':
                stg.append([f'v_pk_mul_f32 {P(r + h)}, {P(r + h)}, {P(vRS + 4 * t + h)}' for h in (0, 2)])
            else:
                ep = vEPS if kind == 'k' else vEPR
                stg.append([f'v_pk_fma_f32 {P(r + h)}, {P(r + h)}, {P(vRS + 4 * t + h)}, {P(ep)}' for h in (0, 2)])
                stg.append([f'v_pk_fma_f32 {P(e + h)}, {P(r + h)}, s[62:63], {P(vNEL)}' for h in (0, 2)])
                stg.append([f'v_exp_f32 v{e + i}, v{e + i} clamp' for i in range(4)])
                if kind == 'k':
                    stg.append([f'v_max_f32 v{r + i}, v{vEPS}, v{r + i}' for i in range(4)])
                    stg.append([f'v_pk_add_f32 {P(r + h)}, {P(r + h)}, {P(e + h)}' for h in (0, 2)])
                else:
                    stg.append([f'v_med3_f32 v{r + i}, v{r + i}, v{vLO}, v{vHI}' for i in range(4)])
                    stg.append([f'v_pk_fma_f32 {P(r + h)}, {P(e + h)}, {P(vMSK)}, {P(r + h)}' for h in (0, 2)])
            stg.append([f'v_cvt_pk_bf16_f32 v{out + h // 2}, v{r + h}, v{r + h + 1}' for h in (0, 2)])
            return stg

        def lockstep(tiles):
            ops = []
            for s in range(max(len(x) for x in tiles)):
                for x in tiles:
                    if s < len(x):
                        ops += x[s]
            return ops

        self.wo_setup()
        wo = self.wo_dma(0) + self.wo_dma(1)
        ep = []
        if kv:
            vT = 104
            vAD = 120
            a.block(f'''
            v_cmp_gt_u32 vcc, 4, v1
            v_cndmask_b32 v{vEPR}, 0, v{vEPS}, vcc
            v_cndmask_b32 v{vEPR + 1}, 0, v{vEPS}, vcc
            v_cndmask_b32 v{vMSK}, 0, 1.0, vcc
            v_cndmask_b32 v{vMSK + 1}, 0, 1.0, vcc
            v_mov_b32 v8, 0xff800000
            v_cndmask_b32 v{vLO}, v8, v{vEPS}, vcc
            v_lshlrev_b32 v9, 4, v2
            v_lshl_add_u32 v9, v5, 2, v9
            v_lshl_add_u32 v{vAD}, v4, 8, v9
            v_mov_b32 v10, {OOB}
            v_add_u32 v9, 1024, v9
            v_cndmask_b32 v{vAD + 1}, v10, v9, vcc
            v_lshlrev_b32 v9, 9, v2
            v_lshl_add_u32 v9, v1, 2, v9
            v_add_u32 v9, {1280 - 512}, v9
            v_add_u32 v11, 64, v9
            v_cndmask_b32 v11, v10, v11, vcc
            v_cmp_eq_u32 vcc, 1, v2
            v_cndmask_b32 v{vAD + 3}, v10, v9, vcc
            v_cndmask_b32 v{vAD + 5}, v10, v11, vcc
            v_cmp_eq_u32 vcc, 2, v2
            v_cndmask_b32 v{vAD + 2}, v{vAD + 3}, v9, vcc
            v_cndmask_b32 v{vAD + 4}, v{vAD + 5}, v11, vcc
            s_cmp_eq_u32 s52, 21
            s_cselect_b32 s3, {fbits(-64.0)}, 0
            v_mov_b32 v9, s3
            v_cndmask_b32 v{vT + 8}, 0, v9, vcc
            v_cndmask_b32 v{vT + 12}, 0, v9, vcc
            v_cmp_eq_u32 vcc, 8, v1
            v_cndmask_b32 v9, 0, 1.0, vcc
            v_mov_b32 v8, 0x7f800000
            v_cmp_gt_u32 vcc, 8, v1
            v_cndmask_b32 v{vLO}, v9, v{vLO}, vcc
            v_cndmask_b32 v{vHI}, v9, v8, vcc
            s_lshl_b32 s54, s51, 2
            s_add_u32 s54, s54, {sW}
            s_lshl_b32 s54, s54, 11
            s_add_u32 s54, s54, {KV}
            ''')
            for i in (1, 2, 3):
                a.e(f'v_mov_b32 v{vT + 8 + i}, 0')
                a.e(f'v_mov_b32 v{vT + 12 + i}, 0')
            for p in range(3):
                pk = vPK + 12 * (p & 1)
                for h in range(2):
                    t = 2 * p + h
                    ep += lockstep([tile_ops(t, 0, 'k', pk + 2 * h, vE), tile_ops(t, 2, 'r', pk + 8 + 2 * h, vE + 4),
                                    tile_ops(t, 1, 'v', pk + 4 + 2 * h, None)])
                K4, V4, R4 = vr(pk, 4), vr(pk + 4, 4), vr(pk + 8, 4)
                C = lambda r: '0' if p == 0 else vr(r, 4)
                ep += [f'{M16} {vr(vT, 4)}, {V4}, {K4}, {C(vT)}',
                       f'{M16} {vr(vT + 4, 4)}, {V4}, {R4}, {C(vT + 4)}',
                       f'{M16} {vr(vT + 8, 4)}, {R4}, {K4}, {vr(vT + 8, 4)}',
                       f'{M16} {vr(vT + 12, 4)}, {R4}, {R4}, {vr(vT + 12, 4)}']
            a.weave(ep, wo)
            self.poll(f'v{vI}', initload, NINIT, issued=True)
            last = None
            for r in range(4):
                a.e(f'buffer_atomic_add_f32 v{vT + r}, v{vAD}, {SWS}, s54 offen offset:{64 * r}')
            for r in range(4):
                a.e(f'buffer_atomic_add_f32 v{vT + 4 + r}, v{vAD + 1}, {SWS}, s54 offen offset:{64 * r}')
            for r in range(4):
                a.e(f'buffer_atomic_add_f32 v{vT + 8 + r}, v{vAD + 2 + (r > 0)}, {SWS}, s54 offen offset:{128 * r}')
            for r in range(4):
                last = a.e(f'buffer_atomic_add_f32 v{vT + 12 + r}, v{vAD + 4 + (r > 0)}, {SWS}, s54 offen offset:{128 * r}')
            fbase = FKV
        else:
            vAD = 120
            for c in range(4):
                a.block(f'''
                s_lshl_b32 s3, s51, 1
                s_add_u32 s3, s3, {sWP}
                s_lshl_b32 s3, s3, 2
                s_add_u32 s3, s3, {c}
                s_mul_i32 s54, s3, 6554
                s_lshr_b32 s54, s54, 16
                s_mul_i32 s54, s54, {10240 - 2560}
                s_lshl_b32 s3, s3, 8
                s_add_u32 s{64 + c}, s3, s54
                ''')
            a.block(f'''
            s_lshl_b32 s3, s52, 1
            s_add_u32 s3, s3, {sWH}
            s_mul_i32 s3, s3, {2 * 40960}
            s_add_u32 s3, s3, {PQ}
            v_mul_u32_u24 v8, 2560, v2
            v_lshl_add_u32 v8, v1, 4, v8
            v_add_u32 v{vAD}, s3, v8
            v_add_u32 v{vAD + 1}, 40960, v{vAD}
            ''')
            box = {}
            for p in range(2):
                for c in range(4):
                    pk = vPK + 4 * ((p * 4 + c) & 3)
                    ep += lockstep([tile_ops(2 * p, c, 'k', pk, vE), tile_ops(2 * p + 1, c, 'k', pk + 2, vE + 4)])
                    ins = f'buffer_store_dwordx4 {vr(pk, 4)}, v{vAD + p}, {SWS}, s{64 + c} offen sc1'
                    ep.append(lambda ins=ins: box.__setitem__('t', a.e(ins)))
            a.weave(ep, wo, 0, len(ep) - 8)
            last = box['t']
            self.poll(f'v{vI}', initload, NINIT, issued=True)
            fbase = FQ
        self.stamp(3)
        self.wo_read(0)
        a.drain(vm=False, lg=True)
        for x in self.wo_dma(2):
            a.run(x)
        a.wait(last)
        a.e('s_barrier')
        self.set_flag(fbase, sFIDX, 'v8')
        self.stamp(4)
        self.wo_read(1)
        a.drain(vm=False, lg=True)
        for x in self.wo_dma(3):
            a.run(x)
        self.wo_read(2)
        self.wo_read(3)
        a.drain()

    vWOD, vWOM, vWOR = 126, 130, 131
    sRB, sCB = 's68', 's69'

    def wo_setup(self):
        a = self.a
        self.wotok = {}
        d = self.vWOD
        a.block(f'''
        s_lshl_b32 {self.sRB}, {sXCD}, 3
        s_lshr_b32 s3, {sI}, 2
        s_add_u32 {self.sRB}, {self.sRB}, s3
        s_and_b32 {self.sCB}, {sI}, 3
        v_mul_u32_u24 v8, 49, v0
        v_lshrrev_b32 v8, 10, v8
        v_mul_u32_u24 v9, 21, v8
        v_sub_u32 v9, v0, v9
        v_min_u32 v9, 19, v9
        v_lshrrev_b32 v10, 2, v9
        v_and_b32 v9, 3, v9
        v_sub_u32 v11, 4, v10
        s_cmp_eq_u32 {sWP}, 1
        s_cselect_b64 vcc, -1, 0
        v_cndmask_b32 v10, v10, v11, vcc
        v_lshlrev_b32 v9, 4, v9
        v_lshl_add_u32 v9, v10, 6, v9
        v_mul_u32_u24 v8, 1280, v8
        s_mul_i32 s3, {sW}, {160 * 1280}
        s_mul_i32 s55, {self.sCB}, 320
        s_add_u32 s3, s3, s55
        v_add3_u32 v{d}, v8, v9, s3
        v_add_u32 v{d + 1}, {3840 - 1008}, v{d}
        v_add_u32 v{d + 2}, {2 * (3840 - 1008)}, v{d}
        v_add_u32 v{d + 3}, {3 * (3840 - 1008)}, v{d}
        v_lshlrev_b32 v8, 5, v6
        v_lshl_add_u32 v8, v5, 3, v8
        s_lshl_b32 s55, {sW}, 15
        v_add_u32 v8, s55, v8
        v_lshl_add_u32 v9, v4, 2, v3
        v_mul_u32_u24 v9, 336, v9
        v_add_u32 v{self.vWOM}, v8, v9
        v_lshrrev_b32 v9, 1, v4
        v_mul_u32_u24 v9, 20, v9
        v_and_b32 v10, 1, v4
        v_lshl_add_u32 v10, v3, 1, v10
        v_add3_u32 v9, v9, v10, 16
        v_mul_u32_u24 v9, 336, v9
        v_add_u32 v{self.vWOR}, v8, v9
        ''')

    def wo_dma(self, u):
        a = self.a
        it = []
        buf = (u & 1) * 14336
        for n in range(14):
            if n % 4 == 0:
                it.append(f's_mov_b32 s47, {(40 * u + 3 * n) * 1280}')
                it.append(f's_add_u32 m0, s55, {buf + n * 1008}')
            ins = f'buffer_load_dwordx4 v{self.vWOD + (n & 3)}, {SWO}, s47 offen offset:{1008 * (n & 3)} lds'
            if n == 13:
                it.append(lambda ins=ins, u=u: self.wotok.__setitem__(u, a.e(ins)))
            else:
                it.append(ins)
        return it

    def wo_read(self, u):
        a = self.a
        buf = (u & 1) * 14336
        a.wait(self.wotok[u])
        for jj in range(2):
            for tau in range(5):
                for t in range(2):
                    a.e(f'ds_read_b64_tr_b16 {ar(((2 * u + jj) * 5 + tau) * 4 + 2 * t, 2)}, v{self.vWOM} offset:{buf + (20 * jj + 2 * t) * 336 + tau * 64}')
        for tau in range(5):
            a.e(f'ds_read_b64_tr_b16 {ar(((8 + (u >> 1)) * 5 + tau) * 4 + 2 * (u & 1), 2)}, v{self.vWOR} offset:{buf + tau * 64}')

    def ws_setup(self, which):
        a = self.a
        self.wtok = {}
        self.wrtok = {}
        self.which = which
        if which == 'w1':
            rowb, rows, sh = 3072, 512, 's67'
            a.block(f'''
            v_and_b32 v8, 7, v0
            v_lshlrev_b32 v9, 2, v6
            v_xor_b32 v8, v8, v9
            ''')
        else:
            rowb, rows, sh = 4096, 384, 's67'
            a.block(f'''
            v_and_b32 v8, 7, v0
            v_lshlrev_b32 v9, 1, v2
            v_xor_b32 v8, v8, v9
            ''')
        self.rowb = rowb
        a.block(f'''
        v_lshrrev_b32 v9, 3, v0
        v_mul_u32_u24 v9, {rowb}, v9
        v_lshl_add_u32 v8, v8, 4, v9
        s_mul_i32 s3, {sW}, {rows * rowb}
        s_lshl_b32 s64, {sh}, 7
        s_add_u32 s3, s3, s64
        v_add_u32 v244, s3, v8
        v_add_u32 v245, {8 * rowb - 1024}, v244
        v_add_u32 v246, {2 * (8 * rowb - 1024)}, v244
        v_add_u32 v247, {3 * (8 * rowb - 1024)}, v244
        s_mul_i32 s64, {sW}, 24576
        ''')
        if which == 'w1':
            a.block(f'''
            v_lshl_add_u32 v8, v3, 2, v4
            v_lshlrev_b32 v8, 7, v8
            v_lshl_add_u32 v8, v5, 3, v8
            v_lshl_add_u32 v8, v6, 5, v8
            v_lshrrev_b32 v9, 1, v4
            v_xor_b32 v9, {sWH}, v9
            v_lshl_add_u32 v8, v9, 6, v8
            v_add_u32 v248, s64, v8
            v_xor_b32 v249, 64, v248
            ''')
        else:
            a.block(f'''
            v_lshl_add_u32 v8, v6, 2, v4
            v_lshrrev_b32 v9, 1, v8
            v_lshl_add_u32 v8, v3, 4, v8
            v_lshlrev_b32 v8, 7, v8
            v_lshl_add_u32 v8, v5, 3, v8
            v_xor_b32 v9, {sW}, v9
            v_lshl_add_u32 v8, v9, 5, v8
            v_add_u32 v248, s64, v8
            v_xor_b32 v249, 32, v248
            v_xor_b32 v250, 64, v248
            v_xor_b32 v251, 96, v248
            ''')

    def ws_dma(self, u):
        a = self.a
        srd = SW1 if self.which == 'w1' else SW2
        it = [f's_mov_b32 s65, {32 * u * self.rowb}', f's_add_u32 m0, s64, {(u % 6) * 4096}']
        for n in range(4):
            ins = f'buffer_load_dwordx4 v{244 + n}, {srd}, s65 offen offset:{1024 * n} lds'
            if n == 3:
                it.append(lambda ins=ins, u=u: self.wtok.__setitem__(u, a.e(ins)))
            else:
                it.append(ins)
        return it

    def ws_read(self, u):
        a = self.a
        buf = (u % 6) * 4096
        a.wait(self.wtok[u])
        for x in range(4):
            for t in range(2):
                if self.which == 'w1':
                    ad, off = 248 + (x & 1), buf + (16 * (x >> 1) + 8 * t) * 128
                else:
                    ad, off = 248 + x, buf + 8 * t * 128
                self.wrtok[u] = a.e(f'ds_read_b64_tr_b16 {ar(16 * u + 4 * x + 2 * t, 2)}, v{ad} offset:{off}')

    def ws_stage(self, u0, u1, NU):
        a = self.a
        for u in range(u0, u1):
            self.ws_read(u)
            if u >= 1 and u - 1 + 6 < NU:
                a.wait(self.wrtok[u - 1])
                for x in self.ws_dma(u - 1 + 6):
                    a.run(x)

    def c_ids(self):
        self.a.block(f'''
        s_mul_i32 s67, {sI}, 52
        s_lshr_b32 s67, s67, 8
        s_mul_i32 s3, s67, 5
        s_sub_u32 s66, {sI}, s3
        s_and_b32 s3, {sXCD}, 1
        s_mul_i32 s3, s3, 5
        s_add_u32 s66, s66, s3
        s_lshr_b32 s3, {sXCD}, 1
        s_mul_i32 s3, s3, 6
        s_add_u32 s67, s67, s3
        ''')

    def phaseB(self):
        a = self.a
        sRB, sCB = self.sRB, self.sCB
        SCR = 98304
        vACC = 16
        vKV = 96
        vD = 192
        vZ = 224
        vOR = 230
        vKA = 238
        vF = 242
        acc = lambda tau: vACC + 16 * tau
        a.block(f'''
        s_lshr_b32 s3, {sRB}, 2
        s_mul_i32 s3, s3, 5
        s_add_u32 s3, s3, {sW}
        s_lshl_b32 s3, s3, 4
        s_add_u32 s44, s3, {FQ}
        v_and_b32 v8, 1, v0
        v_lshlrev_b32 v{vF + 1}, 4, v8
        ''')
        self.poll(f'v{vF}', f'buffer_load_dword v{vF}, v{vF + 1}, {SWS}, s44 offen sc1', 1)
        a.block(f'''
        s_lshl_b32 s3, {sRB}, 2
        s_add_u32 s3, s3, {sW}
        s_mul_i32 s3, s3, 10240
        s_add_u32 s44, s3, {PQ}
        ''')
        for n in range(10):
            if n % 4 == 0:
                if n:
                    a.e('s_add_u32 s44, s44, 4096')
                a.e(f's_add_u32 m0, s55, {n * 1024}')
            tk = a.e(f'buffer_load_dwordx4 v7, {SWS}, s44 offen offset:{1024 * (n & 3)} sc1 lds')
        a.block(f'''
        v_and_b32 v8, 31, v0
        s_lshl_b32 s3, {sRB}, 1
        s_add_u32 s45, s3, {sWH}
        s_lshl_b32 s3, s45, 4
        v_add_u32 v9, s3, v8
        v_mul_u32_u24 v9, 1280, v9
        v_lshl_add_u32 v9, v3, 4, v9
        v_mov_b32 v10, {OOB}
        v_cmp_gt_u32 vcc, 16, v8
        v_cndmask_b32 v9, v10, v9, vcc
        s_mul_i32 s46, {sCB}, 320
        s_lshl_b32 s3, {sWP}, 8
        s_add_u32 s47, s46, s3
        s_lshl_b32 s3, {sWP}, 7
        s_add_u32 s48, s46, s3
        s_add_u32 s48, s48, 64
        s_lshl_b32 s3, {sWP}, 28
        s_add_u32 s49, s46, s3
        s_add_u32 s49, s49, 128
        ''')
        for tau in range(3):
            for kk in range(2):
                a.e(f'buffer_load_dwordx4 {vr(vKV + 8 * tau + 4 * kk, 4)}, v9, {SX}, s{47 + tau} offen offset:{32 * kk}')
        vSEL = vKV + 24
        a.block(f'''
        v_lshlrev_b32 v11, 3, v3
        v_sub_u32 v11, v8, v11
        v_mov_b32 v12, 0x3f80
        v_mov_b32 v13, 0x3f800000
        ''')
        for kk in range(2):
            for q in range(4):
                a.block(f'''
                v_cmp_eq_u32 vcc, {16 * kk + 2 * q}, v11
                v_cndmask_b32 v14, 0, v12, vcc
                v_cmp_eq_u32 vcc, {16 * kk + 2 * q + 1}, v11
                v_cndmask_b32 v{vSEL + 4 * kk + q}, v14, v13, vcc
                ''')
        a.block(f'''
        v_lshlrev_b32 v11, 4, v8
        v_lshl_add_u32 v12, v3, 9, v11
        v_add_u32 v11, 1024, v11
        v_bfe_u32 v13, v8, 2, 1
        v_and_b32 v14, 1, v8
        v_lshl_add_u32 v13, v13, 1, v14
        v_cmp_eq_u32 vcc, 2, v5
        v_cndmask_b32 v13, v13, 4, vcc
        v_lshlrev_b32 v13, 7, v13
        v_add_u32 v13, 1280, v13
        v_cmp_eq_u32 vcc, 3, v5
        v_cndmask_b32 v13, v13, v10, vcc
        v_cmp_le_u32 vcc, 24, v8
        v_cndmask_b32 v13, v13, v10, vcc
        v_lshl_add_u32 v14, v3, 5, v13
        v_add_u32 v13, 64, v13
        v_cmp_gt_u32 vcc, 16, v8
        v_cndmask_b32 v{vKA}, v14, v12, vcc
        v_add_u32 v12, 256, v12
        v_add_u32 v14, 16, v14
        v_cndmask_b32 v{vKA + 1}, v14, v12, vcc
        v_cndmask_b32 v11, v13, v11, vcc
        v_cmp_eq_u32 vcc, 0, v3
        v_cndmask_b32 v{vKA + 2}, v10, v11, vcc
        v_cndmask_b32 v{vKA + 3}, v11, v10, vcc
        v_mov_b32 v{vZ + 2}, 0
        v_mov_b32 v{vZ + 3}, 0
        ''')
        for tau in range(3):
            a.e(f'{M32} {vr(acc(tau), 16)}, {vr(vKV + 8 * tau, 4)}, {vr(vSEL, 4)}, 0')
            a.e(f'{M32} {vr(acc(tau), 16)}, {vr(vKV + 8 * tau + 4, 4)}, {vr(vSEL + 4, 4)}, {vr(acc(tau), 16)}')
        a.block(f'''
        v_mul_u32_u24 v11, 2560, v5
        v_xor_b32 v12, {sWH}, v6
        v_lshl_add_u32 v11, v12, 3, v11
        v_lshl_add_u32 v11, v4, 4, v11
        v_add_u32 v11, s55, v11
        v_lshl_add_u32 v12, v3, 7, v11
        v_mul_u32_u24 v13, 640, v3
        v_add_u32 v13, v13, v11
        ''')
        a.wait(tk)
        for j in range(8):
            for t in range(2):
                a.e(f'ds_read_b64_tr_b16 {ar(200 + 4 * j + 2 * t, 2)}, v12 offset:{(20 * j + 4 * t) * 16}')
        for jq in range(2):
            for t in range(2):
                a.e(f'ds_read_b64_tr_b16 {ar(232 + 4 * jq + 2 * t, 2)}, v13 offset:{(20 * (4 * jq + t) + 16) * 16}')
        self.c_ids()
        self.ws_setup('w1')
        a.block(f'''
        s_mul_i32 s3, {sW}, {44 * 16}
        s_add_u32 s44, s3, {FKV}
        v_min_u32 v8, 43, v0
        v_lshlrev_b32 v{vF + 1}, 4, v8
        s_lshl_b32 s46, {sW}, 14
        s_add_u32 s46, s46, {KV}
        ''')
        a.drain()
        a.e('s_barrier')
        self.stamp(5)
        self.poll(f'v{vF}', f'buffer_load_dword v{vF}, v{vF + 1}, {SWS}, s44 offen sc1', 1)
        self.stamp(6)
        for j in range(8):
            if j and j % 2 == 0:
                a.e('s_add_u32 s46, s46, 4096')
            off = 2048 * (j & 1)
            b = vKV + 12 * j
            a.e(f'buffer_load_dwordx4 {vr(b, 4)}, v{vKA}, {SWS}, s46 offen offset:{off} sc1')
            a.e(f'buffer_load_dwordx4 {vr(b + 4, 4)}, v{vKA + 1}, {SWS}, s46 offen offset:{off} sc1')
            a.e(f'buffer_load_dwordx4 {vr(b + 8, 4)}, v{vKA + 2 + ((j >> 1) & 1)}, {SWS}, s46 offen offset:{off} sc1')
        for u in range(6):
            for x in self.ws_dma(u):
                a.run(x)

        def cvt(j):
            b = vKV + 12 * j
            x = vZ + 4 * (j & 1)
            return [f'v_cvt_pk_bf16_f32 v{b + q}, v{b + 2 * q}, v{b + 2 * q + 1}' for q in range(4)] + \
                   [f'v_cvt_pk_bf16_f32 v{x + q}, v{b + 8 + 2 * q}, v{b + 9 + 2 * q}' for q in range(2)]

        def omf(j):
            b = vKV + 12 * j
            d = vD + 16 * (j & 1)
            return [f'{M32} {vr(d, 16)}, {vr(b, 4)}, {ar(200 + 4 * j, 4)}, 0',
                    f'{M32} {vr(d, 16)}, {vr(vZ + 2 * (j & 1), 4)}, {ar(232 + 4 * (j >> 2), 4)}, {vr(d, 16)}']

        def scale(j):
            d = vD + 16 * (j & 1)
            o = vKV + 12 * j + 4
            it = [f'v_add_f32 v{d + 10}, {fbits(1e-6)}, v{d + 10}', f'v_rcp_f32 v{d + 10}, v{d + 10}']
            it += [f'v_mul_f32 v{d + i}, v{d + i}, v{d + 10}' for i in range(10)]
            it += [f'v_cvt_pk_bf16_f32 v{o + q}, v{d + 2 * q}, v{d + 2 * q + 1}' for q in range(4)]
            it += [f'v_cvt_pk_bf16_f32 v{vOR + j}, v{d + 8}, v{d + 9}']
            return it

        def gemm(kappa):
            o = vKV + 12 * kappa + 4 if kappa < 8 else vOR + 4 * (kappa - 8)
            it = []
            for tau in range(5):
                C = '0' if (kappa == 0 and tau >= 3) else vr(acc(tau), 16)
                it.append(f'{M32} {vr(acc(tau), 16)}, {vr(o, 4)}, {ar((kappa * 5 + tau) * 4, 4)}, {C}')
            return it

        for x in cvt(0) + omf(0) + cvt(1) + omf(1) + scale(0):
            a.e(x)
        for j in range(8):
            fill = (cvt(j + 2) if j + 2 < 8 else []) + (scale(j + 1) if j + 1 < 8 else [])
            g = gemm(j) + (gemm(8) if j == 4 else [])
            if j + 2 < 8:
                a.weave(g[:1], fill[:6])
                a.weave(omf(j + 2) + g[1:], fill[6:])
            else:
                a.weave(g, fill)
        vWA = vKV
        ex = []

        def slot_addr(dst, sgs, tau, rank):
            return [f's_xor_b32 s3, {sWH}, {sgs}', 's_mul_i32 s3, s3, 5',
                    f's_mul_i32 s44, {sWP}, {4 - 2 * tau}', 's_add_u32 s3, s3, s44',
                    f's_add_u32 s3, s3, {tau}', 's_mul_i32 s3, s3, 3', f's_add_u32 s3, s3, {rank}',
                    's_lshl_b32 s3, s3, 11', f's_add_u32 s3, s3, {SCR}', f'v_add_u32 v{dst}, s3, v7']
        ex += [f's_add_u32 s47, {sWP}, 1']
        for tau in range(5):
            ex += slot_addr(vWA + tau, 1, tau, 1 if tau < 2 else ('s47' if tau == 2 else 2))
        for tau in (2, 3, 4):
            ex += slot_addr(vWA + 3 + tau, 0, tau, 0)
        for tau in range(2):
            ex += slot_addr(vWA + 8 + tau, 0, tau, 0)
        a.weave(gemm(9), ex)
        self.stamp(7)
        for tau in range(5):
            for q in range(2):
                a.e(f'ds_write_b128 v{vWA + tau}, {vr(acc(tau) + 8 + 4 * q, 4)} offset:{1024 * q}')
        for tau in (3, 4):
            for q in range(2):
                a.e(f'ds_write_b128 v{vWA + 3 + tau}, {vr(acc(tau) + 4 * q, 4)} offset:{1024 * q}')
        skip = self.lab('ev')
        a.e(f's_cmp_eq_u32 {sWP}, 0')
        a.e(f's_cbranch_scc1 {skip}')
        a.cond_begin()
        for q in range(2):
            a.e(f'ds_write_b128 v{vWA + 5}, {vr(acc(2) + 4 * q, 4)} offset:{1024 * q}')
        a.cond_end()
        a.e(skip + ':')
        vSA = vWA + 10
        a.block(f'''
        s_mul_i32 s3, {sCB}, 5
        s_lshl_b32 s44, {sWP}, 2
        s_add_u32 s47, s3, s44
        s_lshl_b32 s44, {sWP}, 1
        s_add_u32 s48, s3, s44
        s_add_u32 s48, s48, 1
        s_add_u32 s49, s3, 2
        ''')
        for s in (47, 48, 49):
            a.block(f'''
            s_lshl_b32 s{s}, s{s}, 7
            s_add_u32 s{s}, s{s}, s45
            s_lshl_b32 s{s}, s{s}, 10
            s_add_u32 s{s}, s{s}, {H}
            ''')
        a.block(f'''
        v_and_b32 v8, 1, v0
        v_lshl_add_u32 v8, v4, 1, v8
        v_lshlrev_b32 v8, 2, v8
        v_lshl_add_u32 v8, v2, 5, v8
        v_mov_b32 v10, {OOB}
        v_cmp_gt_u32 vcc, 2, v5
        v_cndmask_b32 v{vSA}, v10, v8, vcc
        s_lshl_b32 s50, s45, 7
        s_add_u32 s50, s50, {STATS}
        ''')
        a.drain(vm=False, lg=True)
        a.e('s_barrier')
        vP = 112
        vS = 192
        P2 = lambda x: vr(x, 2)

        def rd(tau):
            ad = vWA + 8 + tau if tau < 2 else vWA + 5
            for k in range(6):
                a.e(f'ds_read_b128 {vr(vP + 24 * tau + 4 * k, 4)}, v{ad} offset:{1024 * k}')

        def fin(tau):
            c = acc(tau)
            for k in range(3):
                for h in range(0, 8, 2):
                    a.e(f'v_pk_add_f32 {P2(c + h)}, {P2(c + h)}, {P2(vP + 24 * tau + 8 * k + h)}')
            for q in range(4):
                a.e(f'v_cvt_pk_bf16_f32 v{c + 8 + q}, v{c + 2 * q}, v{c + 2 * q + 1}')
            a.e(f'buffer_store_dwordx4 {vr(c + 8, 4)}, v7, {SWS}, s{47 + tau} offen sc1')
            for h in range(0, 8, 2):
                if tau == 0:
                    a.e(f'v_pk_mul_f32 {P2(vS + 8 + h)}, {P2(c + h)}, {P2(c + h)}')
                else:
                    a.e(f'v_pk_fma_f32 {P2(vS + 8 + h)}, {P2(c + h)}, {P2(c + h)}, {P2(vS + 8 + h)}')
                    a.e(f'v_pk_add_f32 {P2(vS + h)}, {P2(c + h)}, {P2((acc(0) if tau == 1 else vS) + h)}')
        rd(0)
        rd(1)
        rd(2)
        fin(0)
        fin(1)
        skip = self.lab('od')
        a.e(f's_cmp_eq_u32 {sWP}, 1')
        a.e(f's_cbranch_scc1 {skip}')
        a.cond_begin()
        fin(2)
        a.cond_end()
        a.e(skip + ':')
        for k in range(8):
            a.e(f'v_permlane16_swap_b32 v{vS + k}, v{vS + 8 + k}')
        for h in range(0, 8, 2):
            a.e(f'v_pk_add_f32 {P2(vS + h)}, {P2(vS + h)}, {P2(vS + 8 + h)}')
        for k in range(4):
            a.e(f'v_add_f32_dpp v{vS + 8 + k}, v{vS + k}, v{vS + k} row_ror:8 row_mask:0xf bank_mask:0xf')
        for k in range(4):
            a.e(f'v_add_f32_dpp v{vS + 8 + k}, v{vS + 4 + k}, v{vS + 4 + k} row_ror:8 row_mask:0xf bank_mask:0xc')
        for k in range(2):
            a.e(f'v_add_f32_dpp v{vS + k}, v{vS + 8 + k}, v{vS + 8 + k} row_half_mirror row_mask:0xf bank_mask:0xf')
        for k in range(2):
            a.e(f'v_add_f32_dpp v{vS + k}, v{vS + 10 + k}, v{vS + 10 + k} row_half_mirror row_mask:0xf bank_mask:0xa')
        for k in range(2):
            a.e(f'v_add_f32_dpp v{vS + 2 + k}, v{vS + k}, v{vS + k} quad_perm:[1,0,3,2] row_mask:0xf bank_mask:0xf')
        for k in range(2):
            a.e(f'v_add_f32_dpp v{vS + k}, v{vS + 2 + k}, v{vS + 2 + k} quad_perm:[2,3,0,1] row_mask:0xf bank_mask:0xf')
        a.e(f'v_cndmask_b32 v{vS}, v{vS}, v{vS + 1}, s[56:57]')
        last = a.e(f'buffer_atomic_add_f32 v{vS}, v{vSA}, {SWS}, s50 offen')
        self.stamp(8)
        self.ws_stage(0, 4, 16)
        a.wait(last)
        a.e('s_barrier')
        a.e(f's_lshl_b32 s44, {sRB}, 2')
        a.e(f's_add_u32 s44, s44, {sCB}')
        self.set_flag(FB, 's44', 'v8')
        self.stamp(9)

    def phaseC(self):
        a = self.a
        SCR = 98304
        vACC = 16
        vRAW = 80
        DEPTH = 12
        vHN = 176
        vT = 192
        vST = 208
        vF = 242
        vTA, vH0, vH1 = 240, 241, 252
        acc = lambda ft, dt: vACC + 16 * (2 * ft + dt)
        self.ws_stage(4, 16, 16)
        a.block(f'''
        s_lshl_b32 s3, s67, 1
        s_add_u32 s3, s3, {sWH}
        s_lshl_b32 s3, s3, 6
        v_and_b32 v8, 31, v0
        v_lshl_add_u32 v8, v8, 1, s3
        v_min_u32 v8, 3070, v8
        global_load_ushort v9, v8, {PB1}
        s_lshl_b32 s3, {sW}, 10
        s_add_u32 s44, s3, {FB}
        s_lshl_b32 s3, {sW}, 12
        s_add_u32 s45, s3, {STATS}
        s_add_u32 s46, s3, {SCR + 49152}
        v_lshlrev_b32 v10, 6, v0
        v_add_u32 v11, s46, v10
        v_lshl_add_u32 v{vTA}, v3, 6, s46
        s_lshl_b32 s3, s66, 1
        s_add_u32 s3, s3, {sWP}
        s_lshl_b32 s3, s3, 2
        s_add_u32 s3, s3, {sW}
        s_lshl_b32 s3, s3, 15
        s_add_u32 s47, s3, {H}
        s_xor_b32 s3, s3, {128 * 1024}
        s_add_u32 s48, s3, {H}
        v_add_u32 v{vH0}, s47, v7
        v_add_u32 v{vH1}, s48, v7
        v_cmp_eq_u32 vcc, 0, v3
        v_mov_b32 v12, 0x3f80
        v_cndmask_b32 v{vT}, 0, v9, vcc
        v_cndmask_b32 v{vT + 4}, 0, v12, vcc
        s_mov_b32 s60, 0xffff0000
        ''')
        for i in (1, 2, 3, 5, 6, 7):
            a.e(f'v_mov_b32 v{vT + i}, 0')
        a.e(f'{M32} {vr(acc(0, 0), 16)}, {vr(vT, 4)}, {vr(vT + 4, 4)}, 0')
        a.drain()
        self.stamp(10)
        self.poll(f'v{vF}', f'buffer_load_dword v{vF}, v7, {SWS}, s44 offen sc1', 1)
        self.stamp(11)
        a.e(f's_cmp_ge_u32 {sI}, 30')
        a.e('s_cbranch_scc1 L_cidle')
        for q in range(4):
            a.e(f'buffer_load_dwordx4 {vr(vST + 4 * q, 4)}, v10, {SWS}, s45 offen offset:{16 * q} sc1')

        def load(ks):
            it = []
            if ks % 4 == 0:
                it.append(f's_mov_b32 s49, {ks * 1024}')
            b = vRAW + 8 * (ks % DEPTH)
            it.append(f'buffer_load_dwordx4 {vr(b, 4)}, v{vH0}, {SWS}, s49 offen offset:{1024 * (ks & 3)} sc1')
            it.append(f'buffer_load_dwordx4 {vr(b + 4, 4)}, v{vH1}, {SWS}, s49 offen offset:{1024 * (ks & 3)} sc1')
            return it
        for ks in range(DEPTH):
            for x in load(ks):
                a.e(x)
        eps = 1e-5
        a.e(f's_mov_b32 s50, {fbits(eps * eps)}')
        a.e(f'v_mov_b32 v12, {fbits(1.0 + eps)}')
        S, Q = vST, vST + 8
        for j in range(8):
            a.e(f'v_mul_f32 v{S + j}, {fbits(-1.0 / 640)}, v{S + j}')
        for j in range(8):
            a.e(f'v_mul_f32 v{Q + j}, {fbits(1.0 / 640)}, v{Q + j}')
        for j in range(8):
            a.e(f'v_fma_f32 v{Q + j}, -v{S + j}, v{S + j}, v{Q + j}')
        for j in range(8):
            a.e(f'v_max_f32 v{Q + j}, 0, v{Q + j}')
        for j in range(8):
            a.e(f'v_fma_f32 v{Q + j}, v{Q + j}, v12, s50')
        for j in range(8):
            a.e(f'v_rsq_f32 v{Q + j}, v{Q + j}')
        for j in range(8):
            a.e(f'v_mul_f32 v{S + j}, v{S + j}, v{Q + j}')
        for q in range(4):
            a.e(f'ds_write_b128 v11, {vr(vST + 4 * q, 4)} offset:{16 * q}')

        def streads(ks):
            b = vST + 16 * (ks & 1)
            return [f'ds_read_b128 {vr(b + 4 * q, 4)}, v{vTA} offset:{128 * ks + 16 * q}' for q in range(4)]

        def norm(ks):
            b = vRAW + 8 * (ks % DEPTH)
            m, r = vST + 16 * (ks & 1), vST + 16 * (ks & 1) + 8
            it = []
            for dt in range(2):
                t = vT + 8 * dt
                for q in range(4):
                    it.append(f'v_lshlrev_b32 v{t + 2 * q}, 16, v{b + 4 * dt + q}')
                    it.append(f'v_and_b32 v{t + 2 * q + 1}, s60, v{b + 4 * dt + q}')
                for j in range(8):
                    it.append(f'v_fma_f32 v{t + j}, v{t + j}, v{r + j}, v{m + j}')
                for q in range(4):
                    it.append(f'v_cvt_pk_bf16_f32 v{vHN + 8 * (ks & 1) + 4 * dt + q}, v{t + 2 * q}, v{t + 2 * q + 1}')
            return it

        def mf(ks):
            it = []
            for dt in range(2):
                for ft in range(2):
                    C = '0' if (ks == 0 and (ft or dt)) else vr(acc(ft, dt), 16)
                    it.append(f'{M32} {vr(acc(ft, dt), 16)}, {ar(8 * ks + 4 * ft, 4)}, {vr(vHN + 8 * (ks & 1) + 4 * dt, 4)}, {C}')
            return it
        for x in streads(0) + streads(1) + norm(0):
            a.e(x)
        self.d_ids()
        pre = []
        for ks in range(32):
            fill = []
            if ks + 1 < 32:
                n = norm(ks + 1)
                ld = load(ks + DEPTH) if ks + DEPTH < 32 else []
                fill = ld + (streads(ks + 2) if ks + 2 < 32 else []) + n
            if ks == 20:
                a.e('s_mov_b32 s61, s67')
                a.e('s_mov_b32 s67, s69')
                self.ws_setup('w2')
                pre = sum((self.ws_dma(u) for u in range(6)), [])
            if ks >= 20:
                k = 3 * (ks - 20)
                fill = pre[k:k + 3] + fill
            a.weave(mf(ks), fill)
        self.stamp(12)
        for sg in (1, 2, 3):
            a.block(f'''
            s_xor_b32 s3, {sW}, {sg}
            s_mul_i32 s3, s3, 3
            s_add_u32 s3, s3, {sg - 1}
            s_lshl_b32 s3, s3, 12
            s_add_u32 s3, s3, {SCR}
            v_add_u32 v{8 + sg}, s3, v7
            ''')
        for sg in (1, 2, 3):
            for q in range(4):
                a.e(f'ds_write_b128 v{8 + sg}, {vr(vACC + 16 * sg + 4 * q, 4)} offset:{1024 * q}')
        a.block(f'''
        s_mul_i32 s3, {sW}, 12288
        s_add_u32 s3, s3, {SCR}
        v_add_u32 v8, s3, v7
        s_lshl_b32 s44, s66, 1
        s_add_u32 s44, s44, {sWP}
        s_mul_i32 s3, s44, 52
        s_lshr_b32 s3, s3, 8
        s_mul_i32 s3, s3, 5
        s_sub_u32 s3, s44, s3
        s_cmp_eq_u32 s3, 2
        s_cselect_b64 vcc, -1, 0
        v_and_b32 v12, 1, v4
        v_bfe_u32 v13, v0, 3, 2
        v_lshl_add_u32 v13, v13, 2, v5
        v_cndmask_b32 v12, v12, v6, vcc
        v_cndmask_b32 v13, v13, v1, vcc
        v_mul_u32_u24 v12, {48 * 1024}, v12
        v_lshl_add_u32 v12, v13, 4, v12
        v_lshl_add_u32 v12, v3, 8, v12
        s_mul_i32 s44, s44, 96
        s_lshl_b32 s3, s61, 1
        s_add_u32 s44, s44, s3
        s_add_u32 s44, s44, {sWH}
        s_lshl_b32 s44, s44, 10
        s_add_u32 s44, s44, {U}
        ''')
        a.drain(vm=False, lg=True)
        a.e('s_barrier')
        vP = vRAW
        for k in range(12):
            a.e(f'ds_read_b128 {vr(vP + 4 * k, 4)}, v8 offset:{1024 * k}')
        c1 = -2.0 * 0.7978845608028654 * LOG2E
        a.block(f'''
        s_mov_b32 s46, {fbits(c1 * 0.044715)}
        s_mov_b32 s47, {fbits(c1 * 0.044715)}
        v_mov_b32 v14, {fbits(c1)}
        v_mov_b32 v15, {fbits(c1)}
        ''')
        P2 = lambda x: vr(x, 2)
        for k in range(3):
            for h in range(0, 16, 2):
                a.e(f'v_pk_add_f32 {P2(vACC + h)}, {P2(vACC + h)}, {P2(vP + 16 * k + h)}')
        last = None
        for half in range(2):
            c = vACC + 8 * half
            t = vT + 8 * half
            for h in range(0, 8, 2):
                a.e(f'v_pk_mul_f32 {P2(t + h)}, {P2(c + h)}, {P2(c + h)}')
            for h in range(0, 8, 2):
                a.e(f'v_pk_fma_f32 {P2(t + h)}, {P2(t + h)}, s[46:47], v[14:15]')
            for h in range(0, 8, 2):
                a.e(f'v_pk_mul_f32 {P2(t + h)}, {P2(t + h)}, {P2(c + h)}')
            for j in range(8):
                a.e(f'v_exp_f32 v{t + j}, v{t + j}')
            for j in range(8):
                a.e(f'v_add_f32 v{t + j}, 1.0, v{t + j}')
            for j in range(8):
                a.e(f'v_rcp_f32 v{t + j}, v{t + j}')
            for h in range(0, 8, 2):
                a.e(f'v_pk_mul_f32 {P2(t + h)}, {P2(t + h)}, {P2(c + h)}')
            for q in range(4):
                a.e(f'v_cvt_pk_bf16_f32 v{vHN + 4 * half + q}, v{t + 2 * q}, v{t + 2 * q + 1}')
            last = a.e(f'buffer_store_dwordx4 {vr(vHN + 4 * half, 4)}, v12, {SWS}, s44 offen offset:{512 * half} sc1')
        self.ws_stage(0, 4, 12)
        a.wait(last)
        a.e('s_barrier')
        a.e('s_mul_i32 s44, s66, 24')
        a.e('s_add_u32 s44, s44, s61')
        self.set_flag(FC, 's44', 'v8')
        self.stamp(13)
        self.ws_stage(4, 12, 12)
        a.drain()
        a.e('s_branch L_phaseD')
        a.e('L_cidle:')
        a.e('s_barrier')
        self.d_ids()
        a.e('s_mov_b32 s67, s69')
        self.ws_setup('w2')
        for u in range(6):
            for x in self.ws_dma(u):
                a.run(x)
        self.ws_stage(0, 12, 12)
        a.drain()
        a.e('L_phaseD:')

    def d_ids(self):
        self.a.block(f'''
        s_and_b32 s3, {sXCD}, 1
        s_lshl_b32 s3, s3, 2
        s_and_b32 s68, {sI}, 3
        s_add_u32 s68, s68, s3
        s_lshr_b32 s3, {sXCD}, 1
        s_lshl_b32 s3, s3, 3
        s_lshr_b32 s69, {sI}, 2
        s_add_u32 s69, s69, s3
        ''')

    def phaseD(self):
        a = self.a
        SCR = 98304
        vACC = 16
        vU = 96
        vF, vUA = 242, 236
        acc = lambda sg, tau: vACC + 4 * (5 * sg + tau)
        a.block(f'''
        s_and_b32 s49, s68, 1
        s_mul_i32 s3, s68, 5
        s_add_u32 s44, s3, s49
        s_add_u32 s45, s44, 1
        s_add_u32 s46, s44, 2
        s_add_u32 s47, s44, 3
        s_lshl_b32 s50, s49, 2
        s_add_u32 s48, s3, 4
        s_sub_u32 s48, s48, s50
        s_lshl_b32 s51, s69, 2
        s_add_u32 s51, s51, {sW}
        s_lshl_b32 s3, s51, 5
        v_lshl_add_u32 v8, v1, 1, s3
        global_load_ushort v9, v8, {PB2}
        v_lshl_add_u32 v10, v4, 3, v5
        v_lshlrev_b32 v10, 4, v10
        v_lshl_add_u32 v10, v2, 9, v10
        v_lshlrev_b32 v11, 4, v1
        v_lshl_add_u32 v11, v2, 9, v11
        v_mov_b32 v12, {OOB}
        v_cmp_gt_u32 vcc, 2, v2
        v_cndmask_b32 v10, v12, v10, vcc
        v_cndmask_b32 v11, v12, v11, vcc
        ''')
        for tau in range(5):
            a.block(f'''
            s_lshr_b32 s3, s{44 + tau}, 1
            s_lshl_b32 s3, s3, 7
            s_add_u32 s3, s3, s51
            s_lshl_b32 s3, s3, 10
            s_add_u32 s3, s3, {H}
            ''')
            if tau < 4:
                a.e(f'buffer_load_dwordx4 {vr(vU + 4 * tau, 4)}, v10, {SWS}, s3 offen offset:{64 * (tau & 1)} sc1')
            else:
                a.e('s_lshl_b32 s50, s49, 8')
                a.e('s_add_u32 s3, s3, s50')
                a.e(f'buffer_load_dwordx4 {vr(vU + 4 * tau, 4)}, v11, {SWS}, s3 offen sc1')
        vSEL, vB = vU + 20, vU + 24
        a.block(f'''
        v_lshlrev_b32 v12, 2, v2
        v_sub_u32 v12, v1, v12
        v_cndmask_b32 v12, 64, v12, vcc
        v_mov_b32 v13, 0x3f80
        v_mov_b32 v14, 0x3f800000
        ''')
        for q in range(4):
            k = 8 * (q >> 1) + 2 * (q & 1)
            a.block(f'''
            v_cmp_eq_u32 vcc, {k}, v12
            v_cndmask_b32 v15, 0, v13, vcc
            v_cmp_eq_u32 vcc, {k + 1}, v12
            v_cndmask_b32 v{vSEL + q}, v15, v14, vcc
            ''')
        for q in range(4):
            a.e(f'v_lshlrev_b32 v{vB + q}, 16, v9')
        for tau in range(5):
            a.e(f'{M16} {vr(acc(0, tau), 4)}, {vr(vU + 4 * tau, 4)}, {vr(vSEL, 4)}, {vr(vB, 4)}')
        for tau in range(5):
            a.block(f'''
            s_lshl_b32 s3, s{44 + tau}, 2
            s_add_u32 s3, s3, {sW}
            s_mul_i32 s3, s3, 12288
            s_add_u32 s{52 + tau}, s3, {U}
            ''')
        a.block(f'''
        v_mov_b32 v{vUA}, v7
        v_add_u32 v{vUA + 1}, 4096, v7
        v_add_u32 v{vUA + 2}, 8192, v7
        s_mul_i32 s3, s68, 5
        s_lshr_b32 s3, s3, 2
        s_mul_i32 s3, s3, 24
        s_mul_i32 s50, {sW}, 6
        s_add_u32 s3, s3, s50
        s_lshl_b32 s3, s3, 4
        s_add_u32 s50, s3, {FC}
        v_min_u32 v8, 11, v0
        v_add_u32 v9, 18, v8
        v_cmp_gt_u32 vcc, 6, v8
        v_cndmask_b32 v8, v9, v8, vcc
        v_lshlrev_b32 v{vF + 1}, 4, v8
        ''')
        a.drain()
        self.stamp(14)
        self.poll(f'v{vF}', f'buffer_load_dword v{vF}, v{vF + 1}, {SWS}, s50 offen sc1', 1)
        self.stamp(15)

        def ureg(ks, tau):
            k = ks % 10
            return vr(vU + 20 * k + 4 * tau, 4) if k < 7 else ar(192 + 20 * (k - 7) + 4 * tau, 4)

        def load(ks):
            return [f'buffer_load_dwordx4 {ureg(ks, tau)}, v{vUA + (ks >> 2)}, {SWS}, s{52 + tau} offen offset:{1024 * (ks & 3)} sc1'
                    for tau in range(5)]
        for ks in range(10):
            for x in load(ks):
                a.e(x)
        ex = []
        for sg in (1, 2, 3):
            ex += [f's_xor_b32 s3, {sW}, {sg}', 's_mul_i32 s3, s3, 3', f's_add_u32 s3, s3, {sg - 1}',
                   's_mul_i32 s3, s3, 5120', f's_add_u32 s3, s3, {SCR}', f'v_add_u32 v{8 + sg}, s3, v7']
        ex += [f's_mul_i32 s3, {sW}, 15360', f's_add_u32 s3, s3, {SCR}', 'v_add_u32 v8, s3, v7',
               's_lshl_b32 s3, s51, 4', 'v_add_u32 v12, s3, v1', 'v_mul_u32_u24 v12, 1280, v12',
               'v_lshl_add_u32 v13, v2, 3, v12', 'v_lshl_add_u32 v12, v2, 4, v12',
               's_lshl_b32 s44, s44, 5', 's_lshl_b32 s48, s48, 5']
        for x in ex:
            a.e(x)
        for ks in range(12):
            m = []
            for tau in range(5):
                for sg in range(4):
                    C = '0' if (ks == 0 and sg) else vr(acc(sg, tau), 4)
                    m.append(f'{M16} {vr(acc(sg, tau), 4)}, {ureg(ks, tau)}, {ar(16 * ks + 4 * sg, 4)}, {C}')
            a.weave(m, load(ks + 9) if 1 <= ks <= 2 else [])
        for sg in (1, 2, 3):
            for tau in range(5):
                a.e(f'ds_write_b128 v{8 + sg}, {vr(acc(sg, tau), 4)} offset:{1024 * tau}')
        a.drain(vm=False, lg=True)
        a.e('s_barrier')
        vP = vU
        for k in range(15):
            a.e(f'ds_read_b128 {vr(vP + 4 * k, 4)}, v8 offset:{1024 * k}')
        P2 = lambda x: vr(x, 2)
        for k in range(3):
            for h in range(0, 20, 2):
                a.e(f'v_pk_add_f32 {P2(vACC + h)}, {P2(vACC + h)}, {P2(vP + 20 * k + h)}')
        vO = vACC + 20
        for q in range(10):
            a.e(f'v_cvt_pk_bf16_f32 v{vO + q}, v{vACC + 2 * q}, v{vACC + 2 * q + 1}')
        a.e(f'buffer_store_dwordx4 {vr(vO, 4)}, v12, {SOUT}, s44 offen')
        a.e(f'buffer_store_dwordx4 {vr(vO + 4, 4)}, v12, {SOUT}, s44 offen offset:64')
        a.e(f'buffer_store_dwordx2 {vr(vO + 8, 2)}, v13, {SOUT}, s48 offen')

    def finish(self):
        a = self.a
        if self.stamps:
            a.drain(force=True)
            a.e('s_memrealtime s[44:45]')
            a.drain(force=True)
            a.e('v_mov_b32 v8, 0')
            for n in range(16):
                a.e(f'v_writelane_b32 v8, s{70 + 2 * n}, {n}')
            a.e('v_writelane_b32 v8, s44, 16')
            a.e('s_getreg_b32 s3, hwreg(HW_REG_XCC_ID)')
            a.e('v_writelane_b32 v8, s3, 17')
            a.block(f'''
            s_lshl_b32 s3, s2, 2
            s_add_u32 s3, s3, {sW}
            s_lshl_b32 s3, s3, 8
            s_add_u32 s3, s3, {TS}
            v_lshlrev_b32 v9, 2, v0
            buffer_store_dword v8, v9, {SWS}, s3 offen
            ''')
        a.e('L_end:')
        a.e('s_endpgm')

    def build(self):
        a = self.a
        self.entry()
        if self.stamps:
            for n in range(1, 16):
                a.e(f's_mov_b64 s[{70 + 2 * n}:{71 + 2 * n}], 0')
        a.e(f's_cmp_ge_u32 {sI}, 22')
        a.e('s_cbranch_scc1 L_roleq')
        st = a.save_state()
        self.phaseA('kv')
        a.e('s_branch L_phaseB')
        a.e('L_roleq:')
        a.set_state(st)
        self.phaseA('q')
        a.e('L_phaseB:')
        if self.upto >= 'B':
            self.phaseB()
        if self.upto >= 'C':
            self.phaseC()
        if self.upto >= 'D':
            self.phaseD()
        self.finish()
        a.pad_hazards()
        return a.align8()


HEAD = '''; Fused preLN -> linear attention -> preLN -> token-mixing MLP, one persistent launch (generated by gen/gen.py).
; kernarg: 0 x, 8 wqkv, 16 wo, 24 (unused), 32 w1, 40 b1, 48 w2, 56 b2, 64 out, 72 debug, 80 ws
; @launch grid=(256,1,1) block=(256,1,1) lds=163840
.amdgcn_target "amdgcn-amd-amdhsa--gfx950"
.text
.globl {n}
.p2align 8
.type {n},@function
{n}:
'''
TAIL = '''.section .rodata,"a"
.p2align 6
.amdhsa_kernel {n}
  .amdhsa_next_free_vgpr 512
  .amdhsa_next_free_sgpr 102
  .amdhsa_accum_offset 256
  .amdhsa_group_segment_fixed_size 0
  .amdhsa_kernarg_size 88
  .amdhsa_user_sgpr_count 2
  .amdhsa_user_sgpr_kernarg_segment_ptr 1
  .amdhsa_system_sgpr_workgroup_id_x 1
  .amdhsa_float_denorm_mode_32 3
.end_amdhsa_kernel
'''


def main():
    ap = argparse.ArgumentParser()
    ap.add_argument('-o', default='sequential_preLN__linear_attn_block__mixer_token_mlp__prompt.s')
    ap.add_argument('--stamps', action='store_true')
    ap.add_argument('--upto', default='D')
    args = ap.parse_args()
    g = Gen(args.stamps, args.upto, 100)
    size, _, _ = g.build()
    g = Gen(args.stamps, args.upto, max(size // 128, 65))
    size, npro, nnop = g.build()
    open(args.o, 'w').write(HEAD.format(n=NAME) + g.a.text() + TAIL.format(n=NAME))
    print('code bytes', size, 'promoted', npro, 'unfixed straddles', nnop, file=sys.stderr)


if __name__ == '__main__':
    main()
```
